```python
import torch

def _softmax(x, axis=-1):
    return torch.softmax(x, dim=axis)
def _gelu(x):
    return torch.nn.functional.gelu(x, approximate="tanh")
def _silu(x):
    return torch.nn.functional.silu(x)
def _sigmoid(x):
    return torch.sigmoid(x)
def _layernorm(x, axis=-1, eps=1e-5):
    m = x.mean(dim=axis, keepdim=True)
    v = x.var(dim=axis, keepdim=True, unbiased=False)
    return (x - m) / torch.sqrt(v + eps)
def _scatter_add(tgt, idx, src, axis=0):
    return tgt.clone().index_add_(axis, idx, src)
def _segment_sum(src, seg, n):
    out = torch.zeros((n,) + src.shape[1:], dtype=src.dtype)
    return out.index_add_(0, seg, src)
def _pad(x, pw):
    flat = tuple(v for pair in reversed(pw) for v in pair)
    return torch.nn.functional.pad(x, flat)

kernel_name = 'concat_heads__gqa_block_cached__gqa_block_cached__near_ridge'

def setup_inputs():

    _w = (lambda a: (lambda t: t.to(torch.bfloat16) if t.is_floating_point() else t)(torch.as_tensor(a)))
    def _A_setup():
        B, Sq, D = 8, 192, 512
        Hq, Hkv, Sk, Dh = 32, 32, 1024, 128
        assert Hq % Hkv == 0, (Hq, Hkv)
        return {
            "x": _w((lambda *s: torch.randn(*s, dtype=torch.bfloat16) * 0.8)(B, Sq, D)),
            "k_cache": _w((lambda *s: torch.randn(*s, dtype=torch.bfloat16) * 0.8)(B, Hkv, Sk, Dh)),
            "v_cache": _w((lambda *s: torch.randn(*s, dtype=torch.bfloat16) * 0.05)(B, Hkv, Sk, Dh)),
            "wq": _w((lambda *s: torch.randn(*s, dtype=torch.bfloat16) * 0.8)(D, Hq * Dh) * (D ** -0.5)),
            "wo": _w((lambda *s: torch.randn(*s, dtype=torch.bfloat16) * 0.05)(Hq * Dh, D) * ((Hq * Dh) ** -0.5)),
        }
    _A_in = _A_setup()

    def _B_setup():
        B, Sq, D = 8, 192, 512
        Hq, Hkv, Sk, Dh = 32, 32, 1024, 128
        assert Hq % Hkv == 0, (Hq, Hkv)
        return {
            "x": _w((lambda *s: torch.randn(*s, dtype=torch.bfloat16) * 0.8)(B, Sq, D)),
            "k_cache": _w((lambda *s: torch.randn(*s, dtype=torch.bfloat16) * 0.8)(B, Hkv, Sk, Dh)),
            "v_cache": _w((lambda *s: torch.randn(*s, dtype=torch.bfloat16) * 0.05)(B, Hkv, Sk, Dh)),
            "wq": _w((lambda *s: torch.randn(*s, dtype=torch.bfloat16) * 0.8)(D, Hq * Dh) * (D ** -0.5)),
            "wo": _w((lambda *s: torch.randn(*s, dtype=torch.bfloat16) * 0.05)(Hq * Dh, D) * ((Hq * Dh) ** -0.5)),
        }
    _B_in = _B_setup()

    return {
        "A_x": _A_in["x"],
        "A_k_cache": _A_in["k_cache"],
        "A_v_cache": _A_in["v_cache"],
        "A_wq": _A_in["wq"],
        "A_wo": _A_in["wo"],
        "B_x": _B_in["x"],
        "B_k_cache": _B_in["k_cache"],
        "B_v_cache": _B_in["v_cache"],
        "B_wq": _B_in["wq"],
        "B_wo": _B_in["wo"],
    }

def reference(A_x, A_k_cache, A_v_cache, A_wq, A_wo, B_x, B_k_cache, B_v_cache, B_wq, B_wo):
    def _A_ref(x, k_cache, v_cache, wq, wo):
        B, Sq, D = x.shape
        Hq, Dh = 32, 128
        Hkv = k_cache.shape[1]
        rep = Hq // Hkv
        q = (lambda x, *d: x.permute(*d))((x @ wq).reshape(B, Sq, Hq, Dh), 0, 2, 1, 3)
        k = (lambda x, n, axis: torch.repeat_interleave(x, n, dim=axis))(k_cache, rep, axis=1)
        v = (lambda x, n, axis: torch.repeat_interleave(x, n, dim=axis))(v_cache, rep, axis=1)
        scores = torch.einsum("bhqd,bhkd->bhqk", q, k) * (Dh ** -0.5)
        p = _softmax(scores, axis=-1)
        o = torch.einsum("bhqk,bhkd->bhqd", p, v)
        return (lambda x, *d: x.permute(*d))(o, 0, 2, 1, 3).reshape(B, Sq, Hq * Dh) @ wo

    def _B_ref(x, k_cache, v_cache, wq, wo):
        B, Sq, D = x.shape
        Hq, Dh = 32, 128
        Hkv = k_cache.shape[1]
        rep = Hq // Hkv
        q = (lambda x, *d: x.permute(*d))((x @ wq).reshape(B, Sq, Hq, Dh), 0, 2, 1, 3)
        k = (lambda x, n, axis: torch.repeat_interleave(x, n, dim=axis))(k_cache, rep, axis=1)
        v = (lambda x, n, axis: torch.repeat_interleave(x, n, dim=axis))(v_cache, rep, axis=1)
        scores = torch.einsum("bhqd,bhkd->bhqk", q, k) * (Dh ** -0.5)
        p = _softmax(scores, axis=-1)
        o = torch.einsum("bhqk,bhkd->bhqd", p, v)
        return (lambda x, *d: x.permute(*d))(o, 0, 2, 1, 3).reshape(B, Sq, Hq * Dh) @ wo

    a = _A_ref(A_x, A_k_cache, A_v_cache, A_wq, A_wo)
    b = _B_ref(B_x, B_k_cache, B_v_cache, B_wq, B_wo)
    return torch.concatenate([a, b], axis=-1)
```

```python
import sys
K2_LDS = 131072; K2_VGPR = 352; K2_ACC = 160
def vr(b, n=1): return f"v{b}" if n == 1 else f"v[{b}:{b+n-1}]"
def ar(b, n=1): return f"a{b}" if n == 1 else f"a[{b}:{b+n-1}]"
def mfma(d, a, b, c): return f"v_mfma_f32_32x32x16_bf16 {d}, {a}, {b}, {c}"

def kernel2(A):
    k = "oproj_kernel"
    A.vm = []
    A.raw(f".globl {k}"); A.raw(".p2align 8"); A.raw(f".type {k},@function"); A.label(k)
    S_O = 4; S_W = 8; S_OUT = 12; S_WAVE = 16; S_T0 = 17; S_T1 = 18; S_BLK = 19; S_MT = 20; S_NT = 21
    S_RB = 24
    S_WOFF = 28; S_LB = 29; S_P = 32
    V_ACC = 0; V_WF = 96; V_LO = 128; V_WV = 129; V_RA = 133; V_T = 136
    NB = 8; PD = 7
    A("s_cmp_ge_u32 s2, 256"); A("s_cbranch_scc1 Lk2_end")
    A(f"s_load_dwordx2 s[{S_P}:{S_P+1}], s[0:1], 32")
    A(f"s_load_dwordx2 s[{S_P+2}:{S_P+3}], s[0:1], 72")
    A(f"s_load_dwordx2 s[{S_P+4}:{S_P+5}], s[0:1], 80")
    A(f"s_load_dwordx2 s[{S_P+6}:{S_P+7}], s[0:1], 96")
    A("v_lshrrev_b32 v140, 6, v0")
    A("v_and_b32 v141, 63, v0")
    A(f"v_readfirstlane_b32 s{S_WAVE}, v140")
    A(f"s_and_b32 s{S_T0}, s2, 7")
    A(f"s_lshr_b32 s{S_T1}, s2, 3")
    A(f"s_lshr_b32 s{S_BLK}, s{S_T0}, 2")
    A(f"s_and_b32 s{S_T0}, s{S_T0}, 3")
    A(f"s_lshl_b32 s{S_T0}, s{S_T0}, 2")
    A(f"s_lshr_b32 s{S_MT}, s{S_T1}, 3")
    A(f"s_add_u32 s{S_MT}, s{S_MT}, s{S_T0}")
    A(f"s_and_b32 s{S_NT}, s{S_T1}, 7")
    L = 141
    A(f"v_lshlrev_b32 v{V_LO}, 4, v{L}")
    A(f"v_lshrrev_b32 v142, 3, v{L}")
    A(f"v_and_b32 v143, 7, v{L}")
    A(f"v_and_b32 v144, 2, v142")
    A(f"v_lshlrev_b32 v144, 1, v144")
    A(f"v_xor_b32 v143, v143, v144")
    A(f"v_lshlrev_b32 v143, 4, v143")
    A(f"v_lshl_add_u32 v{V_WV}, v142, 10, v143")
    for i in range(1, 4): A(f"v_add_u32 v{V_WV+i}, {i*7168}, v{V_WV}")
    A("s_waitcnt lgkmcnt(0)")
    A(f"s_lshl_b32 s{S_T0}, s{S_BLK}, 4")
    A(f"s_add_u32 s{S_T0}, s{S_T0}, s{S_MT}")
    A(f"s_mul_i32 s{S_T0}, s{S_T0}, {3*262144}")
    A(f"s_lshl_b32 s{S_T1}, s{S_WAVE}, 16")
    A(f"s_add_u32 s{S_T0}, s{S_T0}, s{S_T1}")
    A(f"s_add_u32 s{S_O}, s{S_P+6}, s{S_T0}")
    A(f"s_addc_u32 s{S_O+1}, s{S_P+7}, 0")
    A(f"s_mov_b32 s{S_O+2}, {2*262144+65536}")
    A(f"s_mov_b32 s{S_O+3}, 0x00020000")
    A(f"s_cmp_eq_u32 s{S_BLK}, 0")
    A(f"s_cselect_b32 s{S_W}, s{S_P}, s{S_P+2}")
    A(f"s_cselect_b32 s{S_W+1}, s{S_P+1}, s{S_P+3}")
    A(f"s_lshl_b32 s{S_T0}, s{S_WAVE}, 20")
    A(f"s_lshl_b32 s{S_T1}, s{S_NT}, 7")
    A(f"s_add_u32 s{S_T0}, s{S_T0}, s{S_T1}")
    A(f"s_add_u32 s{S_W}, s{S_W}, s{S_T0}")
    A(f"s_addc_u32 s{S_W+1}, s{S_W+1}, 0")
    A(f"s_mov_b32 s{S_W+2}, {1023*1024+128}")
    A(f"s_mov_b32 s{S_W+3}, 0x00020000")
    for rb in range(3): A(f"s_mov_b32 s{S_RB+rb}, {rb*262144}")
    A(f"s_mov_b32 s{S_WOFF}, 0")
    A(f"s_lshl_b32 s{S_LB}, s{S_WAVE}, 15")
    def OF(c, ks, rb): return (c % NB) * 24 + (ks * 3 + rb) * 4
    def WF(c, ks, nb): return V_WF + (c % 2) * 16 + (ks * 2 + nb) * 4
    def loads(c):
        r = []
        r.append(("s", f"s_add_u32 m0, s{S_LB}, {(c % NB) * 4096}"))
        for i in range(4):
            r.append(("vm", f"buffer_load_dwordx4 v{V_WV+i}, s[{S_W}:{S_W+3}], s{S_WOFF} offen offset:{i*1024} lds"))
        r.append(("s", f"s_add_u32 s{S_WOFF}, s{S_WOFF}, 32768"))
        for ks in range(2):
            for rb in range(3):
                r.append(("vm", f"buffer_load_dwordx4 {ar(OF(c,ks,rb),4)}, v{V_LO}, s[{S_O}:{S_O+3}], s{S_RB+rb} offen offset:{((c%2)*2+ks)*1024}"))
        if c % 2 == 1:
            for rb in range(3): r.append(("s", f"s_add_u32 s{S_RB+rb}, s{S_RB+rb}, 4096"))
        return r
    def emit(x, c):
        if x[0] == "vm": A.vmem(x[1], f"c{c}")
        else: A(x[1])
    for c in range(PD - 1):
        for x in loads(c): emit(x, c)
    A(f"v_lshrrev_b32 v142, 4, v{L}")
    A(f"v_lshrrev_b32 v143, 2, v{L}")
    A(f"v_and_b32 v143, 3, v143")
    A(f"v_and_b32 v144, 3, v{L}")
    A(f"v_and_b32 v145, 1, v142")
    A(f"v_lshlrev_b32 v145, 5, v145")
    A(f"v_and_b32 v146, 1, v144")
    A(f"v_lshl_add_u32 v145, v146, 4, v145")
    A(f"v_lshrrev_b32 v146, 1, v144")
    A(f"v_lshl_add_u32 v145, v146, 3, v145")
    A(f"v_lshrrev_b32 v146, 5, v{L}")
    A(f"v_lshl_add_u32 v147, v146, 3, v143")
    A(f"v_lshl_add_u32 v145, v147, 7, v145")
    A(f"v_lshrrev_b32 v147, 1, v143")
    for nb in range(2):
        A(f"v_xor_b32 v148, {nb}, v147")
        A(f"v_lshl_add_u32 v148, v148, 6, v145")
        A(f"v_add_u32 v{V_RA+nb}, s{S_LB}, v148")
    def reads(c):
        r = []
        for ks in range(2):
            for nb in range(2):
                for e2 in range(2):
                    r.append(f"ds_read_b64_tr_b16 {vr(WF(c,ks,nb)+2*e2,2)}, v{V_RA+nb} offset:{(c%NB)*4096+(16*ks+4*e2)*128}")
        return r
    A.wait_vm("c0")
    for x in reads(0): A(x)
    for c in range(32):
        mf = []
        for ks in range(2):
            for rb in range(3):
                for nb in range(2):
                    acc = vr(V_ACC + (rb * 2 + nb) * 16, 16)
                    mf.append(mfma(acc, vr(WF(c, ks, nb), 4), ar(OF(c, ks, rb), 4), "0" if (c == 0 and ks == 0) else acc))
        ld = loads(c + PD - 1) if c + PD - 1 < 32 else []
        A("s_waitcnt lgkmcnt(0)")
        li = 0
        rd = reads(c + 1) if c < 31 else []
        for g in range(12):
            A(mf[g])
            n = (len(ld) * (g + 1)) // 12
            while li < n:
                emit(ld[li], c + PD - 1); li += 1
            if g == 5 and rd: A.wait_vm(f"c{c+1}")
            if g >= 6 and rd:
                for x in rd[(g - 6) * 2:(g - 6) * 2 + 2]: A(x)
    A("s_nop 15")
    A("s_barrier")
    A(f"s_mov_b32 s{S_T0}, 0")
    for w in range(4):
        A(f"s_cmp_eq_u32 s{S_WAVE}, {w}")
        A(f"s_cbranch_scc1 Lk2_red{w}")
    for w in range(4):
        A.label(f"Lk2_red{w}")
        for dst in range(4):
            if dst == w: continue
            si = (w - dst - 1) & 3
            for g in range(3):
                G = 3 * dst + g
                for hf in range(2):
                    off = ((dst * 3 + si) * 3 + g) * 2048 + hf * 1024
                    if off < 65536: A(f"ds_write_b128 v{V_LO}, {vr(V_ACC+G*8+4*hf,4)} offset:{off}")
                    else:
                        A(f"v_add_u32 v{V_T}, {off}, v{V_LO}")
                        A(f"ds_write_b128 v{V_T}, {vr(V_ACC+G*8+4*hf,4)}")
        for i in range(24): A(f"v_mov_b32 v{96+i}, v{V_ACC+w*24+i}")
        A(f"s_branch Lk2_join")
    A.label("Lk2_join")
    A("s_waitcnt lgkmcnt(0)")
    A("s_barrier")
    A(f"s_mul_i32 s{S_T0}, s{S_WAVE}, {9*2048}")
    A(f"v_add_u32 v{V_T}, s{S_T0}, v{V_LO}")
    for si in range(3):
        for g in range(3):
            for hf in range(2):
                A(f"ds_read_b128 {vr(si*24+g*8+hf*4,4)}, v{V_T} offset:{(si*3+g)*2048+hf*1024}")
    A(f"s_mul_i32 s{S_T0}, s{S_MT}, {96*2048}")
    A(f"s_lshl_b32 s{S_T1}, s{S_BLK}, 10")
    A(f"s_add_u32 s{S_T0}, s{S_T0}, s{S_T1}")
    A(f"s_lshl_b32 s{S_T1}, s{S_NT}, 7")
    A(f"s_add_u32 s{S_T0}, s{S_T0}, s{S_T1}")
    A(f"s_add_u32 s{S_OUT}, s{S_P+4}, s{S_T0}")
    A(f"s_addc_u32 s{S_OUT+1}, s{S_P+5}, 0")
    A(f"s_mov_b32 s{S_OUT+2}, {95*2048+128}")
    A(f"s_mov_b32 s{S_OUT+3}, 0x00020000")
    A(f"v_and_b32 v142, 31, v{L}")
    A(f"v_lshlrev_b32 v142, 11, v142")
    A(f"v_lshl_add_u32 v142, v146, 4, v142")
    for g in range(3):
        A(f"s_mul_i32 s{S_T0}, s{S_WAVE}, 3")
        A(f"s_add_u32 s{S_T0}, s{S_T0}, {g}")
        A(f"s_lshr_b32 s{S_T1}, s{S_T0}, 2")
        A(f"s_lshl_b32 s{S_T1}, s{S_T1}, 16")
        A(f"s_and_b32 s{S_T0}, s{S_T0}, 3")
        A(f"s_lshl_b32 s{S_T0}, s{S_T0}, 5")
        A(f"s_add_u32 s{S_RB+g}, s{S_T0}, s{S_T1}")
    A("s_waitcnt lgkmcnt(0)")
    for si in range(3):
        for i in range(24): A(f"v_add_f32 v{96+i}, v{96+i}, v{si*24+i}")
    for g in range(3):
        for i in range(4): A(f"v_cvt_pk_bf16_f32 v{120+g*4+i}, v{96+g*8+2*i}, v{96+g*8+2*i+1}")
    for g in range(3):
        A(f"buffer_store_dwordx4 {vr(120+g*4,4)}, v142, s[{S_OUT}:{S_OUT+3}], s{S_RB+g} offen")
    A.label("Lk2_end")
    A("s_endpgm")
```

```python
import sys, math

NAME = "concat_heads__gqa_block_cached__gqa_block_cached__near_ridge"

class Asm:
    def __init__(self):
        self.L = []
        self.vm = []
    def __call__(self, s):
        self.L.append("    " + s)
    def label(self, s):
        self.L.append(s + ":")
    def raw(self, s):
        self.L.append(s)
    def comment(self, s):
        self.L.append("    ; " + s)
    def vmem(self, s, tag):
        self(s); self.vm.append(tag)
    def wait_vm(self, tag):
        idx = max(i for i, t in enumerate(self.vm) if t == tag)
        n = len(self.vm) - 1 - idx
        assert n <= 63, n
        self(f"s_waitcnt vmcnt({n})")
    def text(self):
        return "\n".join(self.L) + "\n"

def vr(b, n=1): return f"v{b}" if n == 1 else f"v[{b}:{b+n-1}]"
def ar(b, n=1): return f"a{b}" if n == 1 else f"a[{b}:{b+n-1}]"
def sr(b, n=1): return f"s{b}" if n == 1 else f"s[{b}:{b+n-1}]"

V_Q = 0
V_S = 96
V_NM = 144
V_P = 192
V_T = 216
V_L = 224
V_LT = 227
V_KA = 229
V_VA = 237
V_DO = 241
V_ST = 245
V_X0 = 246
V_GX = 192; V_GW = 193; V_WX = 194; V_WW = 195
V_RX = 197
V_RW = 199
A_O = 0; A_K = 192; A_V = 224
A_FR = 0
A_LD = 112
QD = 4

S_KV = 4; S_X = 8; S_WQ = 12; S_WS = 16
S_WAVE = 20; S_U = 21; S_RH = 22; S_T0 = 23
S_SLOT = 24
S_GOFF = 28; S_GNEXT = 29; S_CNT = 30; S_T1 = 31
S_SCALE = 32
S_THR = 34; S_G2 = 35
S_XO = 36
S_WO = 40
S_RET = 44
S_P = 48
S_BLK = 80; S_B = 81; S_HP = 82

LDS_X = 131072
LDS_W = 131072 + 12288

def Qreg(rb, ks): return V_Q + (rb * 8 + ks) * 4
def Sreg(rb): return V_S + rb * 16
def NMreg(rb): return V_NM + rb * 16
def Preg(rb, j): return V_P + rb * 8 + j * 4
def Oreg(rb, db): return A_O + (rb * 4 + db) * 16
def Kf(ks): return A_K + ks * 4
def Vf(j, db): return A_V + (j * 4 + db) * 4

def mfma(d, a, b, c): return f"v_mfma_f32_32x32x16_bf16 {d}, {a}, {b}, {c}"

def dma_batch(slot_idx):
    r = []
    r.append(("s", f"s_mov_b32 m0, s{S_SLOT+slot_idx}"))
    r.append(("s", f"s_add_u32 s{S_G2}, s{S_GOFF}, 4096"))
    for i in range(4):
        r.append(("vm", f"buffer_load_dwordx4 v{V_DO+i}, s[{S_KV}:{S_KV+3}], s{S_GOFF} offen offset:{i*1024} nt lds"))
    r.append(("s", f"s_add_u32 m0, s{S_SLOT+slot_idx}, 4096"))
    r.append(("s", f"s_mov_b32 s{S_GOFF}, s{S_GNEXT}"))
    for i in range(4):
        r.append(("vm", f"buffer_load_dwordx4 v{V_DO+i}, s[{S_KV}:{S_KV+3}], s{S_G2} offen offset:{i*1024} nt lds"))
    r.append(("s", f"s_add_u32 s{S_GNEXT}, s{S_GNEXT}, 8192"))
    return r

def softmax_core(rb):
    s = Sreg(rb); r = []
    def T(i): return V_T + (i % 8)
    for pr in range(9):
        if pr < 8:
            r.append(f"v_exp_f32 v{T(2*pr)}, v{s+2*pr}")
            r.append(f"v_exp_f32 v{T(2*pr+1)}, v{s+2*pr+1}")
        if pr >= 1:
            q = pr - 1
            r.append(f"v_cvt_pk_bf16_f32 v{V_P+rb*8+q}, v{T(2*q)}, v{T(2*q+1)}")
            if q == 1:
                r.append(f"v_add_f32 v{V_LT}, v{T(0)}, v{T(2)}")
                r.append(f"v_add_f32 v{V_LT+1}, v{T(1)}, v{T(3)}")
            elif q >= 2:
                r.append(f"v_add_f32 v{V_LT}, v{V_LT}, v{T(2*q)}")
                r.append(f"v_add_f32 v{V_LT+1}, v{V_LT+1}, v{T(2*q+1)}")
    r.append(f"v_add_f32 v{V_LT}, v{V_LT}, v{V_LT+1}")
    return r

def rowmax(rb, dst, tmp):
    s = Sreg(rb); r = []
    r.append(f"v_max3_f32 v{dst}, v{s}, v{s+1}, v{s+2}")
    for i in range(3, 15, 2):
        r.append(f"v_max3_f32 v{dst}, v{dst}, v{s+i}, v{s+i+1}")
    r.append(f"v_max_f32 v{dst}, v{dst}, v{s+15}")
    r.append(f"v_mov_b32 v{tmp}, v{dst}")
    r.append("s_nop 1")
    r.append(f"v_permlane32_swap_b32 v{dst}, v{tmp}")
    r.append("s_nop 1")
    r.append(f"v_max_f32 v{dst}, v{dst}, v{tmp}")
    return r

def softmax_first(rb):
    s = Sreg(rb); nm = NMreg(rb)
    r = rowmax(rb, V_X0, V_X0 + 1)
    for i in range(16): r.append(f"v_sub_f32 v{nm+i}, 0, v{V_X0}")
    for i in range(16): r.append(f"v_sub_f32 v{s+i}, v{s+i}, v{V_X0}")
    r += softmax_core(rb)
    r.append(f"v_mov_b32 v{V_L+rb}, v{V_LT}")
    return r

def slow_path(A, rb):
    s = Sreg(rb); nm = NMreg(rb)
    A.label(f"Lslow{rb}")
    A("s_nop 15"); A("s_nop 15")
    for x in rowmax(rb, V_X0, V_X0 + 1): A(x)
    A(f"v_max_f32 v{V_X0}, 0, v{V_X0}")
    A(f"v_sub_f32 v{V_X0+1}, 0, v{V_X0}")
    A(f"v_exp_f32 v{V_X0+1}, v{V_X0+1}")
    for i in range(16): A(f"v_sub_f32 v{nm+i}, v{nm+i}, v{V_X0}")
    for i in range(16): A(f"v_sub_f32 v{s+i}, v{s+i}, v{V_X0}")
    A(f"v_mul_f32 v{V_L+rb}, v{V_L+rb}, v{V_X0+1}")
    for i in range(0, 64, 4):
        o = Oreg(rb, 0) + i
        for k in range(4): A(f"v_accvgpr_read_b32 v{V_X0+2+k}, a{o+k}")
        for k in range(4): A(f"v_mul_f32 v{V_X0+2+k}, v{V_X0+2+k}, v{V_X0+1}")
        for k in range(4): A(f"v_accvgpr_write_b32 a{o+k}, v{V_X0+2+k}")
    for x in softmax_core(rb): A(x)
    A("s_nop 3")
    A(f"s_setpc_b64 s[{S_RET}:{S_RET+1}]")

def is_valu(s):
    return s.startswith("v_")

def slots(s):
    if s.startswith("v_exp") or s.startswith("v_rcp"): return 2
    return 1

def spread(items, gaps, gap_fill, cap=6.0):
    total = sum(slots(x) for x in items)
    n = len(gaps); i = 0; done = 0.0
    for gi, g in enumerate(gaps):
        target = total * (gi + 1) / n
        while i < len(items) and (done + slots(items[i]) / 2.0 <= target + 1e-9 or gi == n - 1):
            gap_fill[g].append(items[i]); done += slots(items[i]); i += 1
    assert i == len(items)

class Tramp:
    def __init__(self): self.items = []; self.n = 0

def tile_iter(A, t_mod, first, second, tramp, carry_in, last=False):
    pre = [[] for _ in range(48)]
    val = [[] for _ in range(48)]
    M = [None] * 48
    slot = t_mod; nslot = (t_mod + 1) % 4
    def qk(rb, base):
        for ks in range(8):
            c = (("0" if first else vr(NMreg(rb), 16)) if ks == 0 else vr(Sreg(rb), 16))
            M[base + ks] = mfma(vr(Sreg(rb), 16), ar(Kf(ks), 4), vr(Qreg(rb, ks), 4), c)
    def pv(rb, base, zero):
        for j in range(2):
            for db in range(4):
                c = "0" if (zero and j == 0) else ar(Oreg(rb, db), 16)
                M[base + j * 4 + db] = mfma(ar(Oreg(rb, db), 16), ar(Vf(j, db), 4), vr(Preg(rb, j), 4), c)
    qk(0, 0)
    if not first: pv(2, 8, second)
    qk(1, 16); pv(0, 24, first); qk(2, 32); pv(1, 40, first)

    def check(rb):
        n = tramp.n; tramp.n += 1
        tramp.items.append((n, rb))
        return [f"v_cmp_nge_f32 vcc, s{S_THR}, v{V_LT}"], [f"s_cbranch_vccnz Ltr{n}", f"Lret{n}:", f"v_add_f32 v{V_L+rb}, v{V_L+rb}, v{V_LT}"]

    if carry_in is not None:
        body, chk = carry_in
        spread(body, list(range(0, 7)), val)
        if chk:
            c1, c2 = check(2)
            val[6] += c1; pre[7] += c2
    pre[7] += ["s_waitcnt vmcnt(16)", "s_barrier"]
    for i in range(8):
        j, db = i // 4, i % 4
        for e2 in range(2):
            off = 32768 + slot * 8192 + (16 * j + 4 * e2) * 256
            pre[9 + i].append(f"ds_read_b64_tr_b16 {ar(Vf(j, db) + 2 * e2, 2)}, v{V_VA+db} offset:{off}")
    d = dma_batch(slot)
    dm = [x[1] for x in d]
    dpos = [8, 12, 17, 21, 25, 29, 41, 45]
    pre[dpos[0]] += dm[0:3]; pre[dpos[1]] += dm[3:4]; pre[dpos[2]] += dm[4:5]; pre[dpos[3]] += dm[5:6]
    pre[dpos[4]] += dm[6:9]; pre[dpos[5]] += dm[9:10]; pre[dpos[6]] += dm[10:11]; pre[dpos[7]] += dm[11:13]
    def place(rb, g0, g1):
        if first:
            spread(softmax_first(rb), list(range(g0, g1 + 1)), val)
        else:
            spread(softmax_core(rb), list(range(g0, g1)), val)
            c1, c2 = check(rb)
            val[g1 - 1] += c1; pre[g1] += c2
    if first: pre[10].append('s_nop 3')
    place(0, 11, 23)
    pre[23].append("s_waitcnt lgkmcnt(0)")
    for g in (24, 25, 41, 42): pre[g].append("s_nop 3")
    place(1, 27, 39)
    for ks in range(8):
        pre[33 + ks].append(f"ds_read_b128 {ar(Kf(ks), 4)}, v{V_KA+ks} offset:{nslot*8192}")
    full = softmax_first(2) if first else softmax_core(2)
    tot = sum(slots(x) for x in full); acc = 0; k = 0
    while acc < tot * 5.0 / 12.0: acc += slots(full[k]); k += 1
    spread(full[:k], list(range(43, 48)), val)
    carry = (full[k:], not first)
    pre[47].append("s_waitcnt lgkmcnt(0)")
    return M, pre, val, carry

def emit_gaps(A, M, pre, val, lo=0, hi=48):
    for g in range(lo, hi):
        if M[g] is not None: A(M[g])
        for x in pre[g]:
            if x.endswith(":"): A.label(x[:-1])
            else: A(x)
        for x in val[g]: A(x)

def hazard_check(lines):
    import re
    def regs(tok):
        m = re.match(r"([va])\[(\d+):(\d+)\]", tok)
        if m: return {(m.group(1), i) for i in range(int(m.group(2)), int(m.group(3)) + 1)}
        m = re.match(r"([va])(\d+)$", tok)
        if m: return {(m.group(1), int(m.group(2)))}
        return set()
    ins = []
    for l in lines:
        l = l.split(";")[0].strip()
        if not l or l.endswith(":") or l.startswith("."): continue
        ins.append(l)
    last_mfma_w = {}; last_valu_w = {}; last_trans_w = {}; pos = 0; bad = 0
    last_mfma_c = {}
    for l in ins:
        op, _, rest = l.partition(" ")
        toks = [t.strip() for t in rest.split(",")]
        toks = [t.split(" ")[0] for t in toks]
        if op.startswith("v_mfma"):
            d = regs(toks[0]); srcs = regs(toks[1]) | regs(toks[2]); c = regs(toks[3])
            for r in srcs | c:
                if r in last_valu_w and pos - last_valu_w[r] - 1 < 2: print("HAZ valu->mfma", l); bad += 1
            for r in srcs:
                if r in last_mfma_w and pos - last_mfma_w[r] - 1 < 12: print("HAZ mfma->mfma AB", l); bad += 1
            if c != d:
                for r in c:
                    if r in last_mfma_w and pos - last_mfma_w[r] - 1 < 10: print("HAZ mfma->mfma C", l); bad += 1
            for r in d: last_mfma_w[r] = pos
            for r in c: last_mfma_c[r] = pos
        elif op.startswith("v_") or op.startswith("ds_") or op.startswith("buffer_") or op.startswith("global_"):
            allr = set()
            for t in toks: allr |= regs(t)
            for r in allr:
                if r in last_mfma_w and pos - last_mfma_w[r] - 1 < 12: print("HAZ mfma->use", l, pos - last_mfma_w[r] - 1); bad += 1
            if op.startswith("v_"):
                d = regs(toks[0])
                srcs = set()
                for t in toks[1:]: srcs |= regs(t)
                if not (op.startswith("v_exp") or op.startswith("v_rcp")):
                    for r in srcs:
                        if r in last_trans_w and pos - last_trans_w[r] - 1 < 1: print("HAZ trans", l); bad += 1
                if op.startswith("v_permlane"):
                    for r in d | srcs:
                        if r in last_valu_w and pos - last_valu_w[r] - 1 < 2: print("HAZ permlane", l); bad += 1
                    d = d | srcs
                for r in d:
                    if r in last_mfma_c and pos - last_mfma_c[r] - 1 < 7: print("HAZ WAR srcC", l); bad += 1
                    last_valu_w[r] = pos
                    if op.startswith("v_exp") or op.startswith("v_rcp"): last_trans_w[r] = pos
                    else: last_trans_w.pop(r, None)
        if op == "s_nop": pos += int(rest) + 1
        else: pos += 1
    return bad

TS = False
def stamp(A, i):
    if TS and "gs" not in sys.argv and "qs" not in sys.argv:
        A(f"s_mem{'real' if TS == 2 else ''}time s[{84+2*i}:{85+2*i}]")
def kernel1(A, dbg=None):
    k = "attn_kernel"
    A.raw(f".globl {k}"); A.raw(".p2align 8"); A.raw(f".type {k},@function"); A.label(k)
    A("s_cmp_ge_u32 s2, 256"); A("s_cbranch_scc1 Lk1_end")
    A(f"s_load_dwordx8 s[{S_P}:{S_P+7}], s[0:1], 0")
    A(f"s_load_dwordx8 s[{S_P+8}:{S_P+15}], s[0:1], 40")
    A(f"s_load_dwordx2 s[{S_P+16}:{S_P+17}], s[0:1], 96")
    stamp(A, 0)
    A("v_lshrrev_b32 v1, 6, v0")
    A("v_and_b32 v2, 63, v0")
    A(f"v_readfirstlane_b32 s{S_WAVE}, v1")
    A(f"s_and_b32 s{S_T0}, s2, 7")
    A(f"s_lshr_b32 s{S_T1}, s2, 3")
    A(f"s_lshr_b32 s{S_BLK}, s{S_T0}, 2")
    A(f"s_and_b32 s{S_T0}, s{S_T0}, 3")
    A(f"s_lshl_b32 s{S_T0}, s{S_T0}, 2")
    A(f"s_lshr_b32 s{S_HP}, s{S_T1}, 3")
    A(f"s_add_u32 s{S_HP}, s{S_HP}, s{S_T0}")
    A(f"s_and_b32 s{S_B}, s{S_T1}, 7")
    A(f"s_lshr_b32 s{S_U}, s{S_WAVE}, 1")
    A(f"s_and_b32 s{S_RH}, s{S_WAVE}, 1")
    A("s_waitcnt lgkmcnt(0)")
    A(f"s_cmp_eq_u32 s{S_BLK}, 0")
    for i in range(8): A(f"s_cselect_b32 s{S_P+i}, s{S_P+i}, s{S_P+8+i}")
    A(f"s_cmp_eq_u32 s{S_RH}, 0")
    A(f"s_cselect_b32 s{S_KV}, s{S_P+2}, s{S_P+4}")
    A(f"s_cselect_b32 s{S_KV+1}, s{S_P+3}, s{S_P+5}")
    A(f"s_lshl_b32 s{S_T0}, s{S_B}, 5")
    A(f"s_lshl_b32 s{S_T1}, s{S_HP}, 1")
    A(f"s_add_u32 s{S_T1}, s{S_T1}, s{S_U}")
    A(f"s_add_u32 s{S_T0}, s{S_T0}, s{S_T1}")
    A(f"s_lshl_b32 s{S_T0}, s{S_T0}, 18")
    if "samekv" in sys.argv: A(f"s_mov_b32 s{S_T0}, 0")
    A(f"s_add_u32 s{S_KV}, s{S_KV}, s{S_T0}")
    A(f"s_addc_u32 s{S_KV+1}, s{S_KV+1}, 0")
    A(f"s_mov_b32 s{S_KV+2}, 262144")
    A(f"s_mov_b32 s{S_KV+3}, 0x00020000")
    A(f"s_lshl_b32 s{S_T0}, s{S_BLK}, 3")
    A(f"s_add_u32 s{S_T0}, s{S_T0}, s{S_B}")
    A(f"s_mul_i32 s{S_T0}, s{S_T0}, 6")
    A(f"s_mul_i32 s{S_G2}, s{S_RH}, 3")
    A(f"s_add_u32 s{S_T0}, s{S_T0}, s{S_G2}")
    A(f"s_lshl_b32 s{S_T0}, s{S_T0}, 5")
    A(f"s_add_u32 s{S_T0}, s{S_T0}, s{S_T1}")
    A(f"s_lshl_b32 s{S_T0}, s{S_T0}, 13")
    A(f"s_add_u32 s{S_WS}, s{S_P+16}, s{S_T0}")
    A(f"s_addc_u32 s{S_WS+1}, s{S_P+17}, 0")
    A(f"s_mov_b32 s{S_WS+2}, {2*262144+8192}")
    A(f"s_mov_b32 s{S_WS+3}, 0x00020000")
    A(f"s_mul_i32 s{S_T0}, s{S_B}, 196608")
    A(f"s_mul_i32 s{S_T1}, s{S_WAVE}, 49152")
    A(f"s_add_u32 s{S_T0}, s{S_T0}, s{S_T1}")
    A(f"s_add_u32 s{S_X}, s{S_P}, s{S_T0}")
    A(f"s_addc_u32 s{S_X+1}, s{S_P+1}, 0")
    A(f"s_mov_b32 s{S_X+2}, 49152")
    A(f"s_mov_b32 s{S_X+3}, 0x00020000")
    A(f"s_lshl_b32 s{S_T0}, s{S_HP}, 9")
    A(f"s_lshl_b32 s{S_T1}, s{S_WAVE}, 16")
    A(f"s_add_u32 s{S_T0}, s{S_T0}, s{S_T1}")
    A(f"s_add_u32 s{S_WQ}, s{S_P+6}, s{S_T0}")
    A(f"s_addc_u32 s{S_WQ+1}, s{S_P+7}, 0")
    A(f"s_sub_u32 s{S_WQ+2}, {512*8192}, s{S_T0}")
    A(f"s_mov_b32 s{S_WQ+3}, 0x00020000")
    for i in range(3): A(f"s_mov_b32 s{S_XO+i}, {i*16384}")
    for i in range(4): A(f"s_mov_b32 s{S_WO+i}, {i*16384}")
    L = 2
    A(f"v_lshrrev_b32 v3, 2, v{L}")
    A(f"v_and_b32 v4, 3, v{L}")
    A(f"v_lshlrev_b32 v5, 10, v3")
    A(f"v_lshl_add_u32 v{V_GX}, v4, 4, v5")
    A(f"v_lshrrev_b32 v5, 5, v{L}")
    A(f"v_and_b32 v6, 31, v{L}")
    A(f"v_lshlrev_b32 v7, 13, v5")
    A(f"v_lshl_add_u32 v{V_GW}, v6, 4, v7")
    def qload(c):
        base = A_LD + (c % QD) * 28
        r = []
        for i in range(3):
            r.append((f"buffer_load_dwordx4 {ar(base+4*i,4)}, v{V_GX}, s[{S_X}:{S_X+3}], s{S_XO+i} offen offset:{c*64}", f"q{c}"))
        for i in range(4):
            r.append((f"buffer_load_dwordx4 {ar(base+12+4*i,4)}, v{V_GW}, s[{S_WQ}:{S_WQ+3}], s{S_WO+i} offen", f"q{c}"))
        return r
    def qload_adv():
        return [f"s_add_u32 s{S_WO+i}, s{S_WO+i}, 262144" for i in range(4)]
    for c in range(QD):
        for s_, t_ in qload(c): A.vmem(s_, t_)
        for s_ in qload_adv(): A(s_)
    A(f"v_lshrrev_b32 v7, 4, v{L}")
    A(f"v_xor_b32 v8, v4, v7")
    A(f"v_lshlrev_b32 v8, 4, v8")
    A(f"v_lshl_add_u32 v8, v3, 6, v8")
    A(f"s_mul_i32 s{S_T0}, s{S_WAVE}, 3072")
    A(f"s_add_u32 s{S_T0}, s{S_T0}, {LDS_X}")
    A(f"v_add_u32 v{V_WX}, s{S_T0}, v8")
    A(f"v_lshrrev_b32 v8, 2, v6")
    A(f"s_lshl_b32 s{S_T0}, s{S_WAVE}, 12")
    A(f"s_add_u32 s{S_T0}, s{S_T0}, {LDS_W}")
    for p in range(2):
        A(f"v_add_u32 v9, {2*p}, v5")
        A(f"v_xor_b32 v9, v8, v9")
        A(f"v_lshlrev_b32 v9, 6, v9")
        A(f"v_lshl_add_u32 v9, v4, 4, v9")
        A(f"v_lshl_add_u32 v9, v5, 9, v9")
        A(f"v_add_u32 v{V_WW+p}, s{S_T0}, v9")
    A(f"v_and_b32 v9, 3, v8")
    A(f"s_mul_i32 s{S_T0}, s{S_RH}, 6144")
    A(f"s_add_u32 s{S_T0}, s{S_T0}, {LDS_X}")
    for ks in range(2):
        A(f"v_add_u32 v10, {2*ks}, v5")
        A(f"v_xor_b32 v10, v10, v9")
        A(f"v_lshlrev_b32 v10, 4, v10")
        A(f"v_lshl_add_u32 v10, v6, 6, v10")
        A(f"v_add_u32 v{V_RX+ks}, s{S_T0}, v10")
    A(f"v_and_b32 v9, 3, v3")
    A(f"v_and_b32 v10, 1, v7")
    A(f"v_lshlrev_b32 v10, 5, v10")
    A(f"v_and_b32 v11, 1, v4")
    A(f"v_lshl_add_u32 v10, v11, 4, v10")
    A(f"v_lshrrev_b32 v11, 1, v4")
    A(f"v_lshl_add_u32 v10, v11, 3, v10")
    A(f"v_lshl_add_u32 v11, v5, 3, v9")
    A(f"s_lshl_b32 s{S_T0}, s{S_U}, 8")
    A(f"s_add_u32 s{S_T0}, s{S_T0}, {LDS_W}")
    A(f"s_lshl_b32 s{S_T1}, s{S_U}, 16")
    for db in range(4):
        A(f"v_xor_b32 v12, {db}, v9")
        A(f"v_lshl_add_u32 v12, v12, 6, v10")
        A(f"v_lshl_add_u32 v13, v11, 9, v12")
        A(f"v_add_u32 v{V_RW+db}, s{S_T0}, v13")
        A(f"v_lshl_add_u32 v13, v11, 8, v12")
        A(f"v_add_u32 v{V_VA+db}, s{S_T1}, v13")
    A(f"v_and_b32 v12, 0x13, v6")
    A(f"v_and_b32 v13, 4, v6")
    A(f"v_lshl_add_u32 v12, v13, 1, v12")
    A(f"v_and_b32 v13, 8, v6")
    A(f"v_lshrrev_b32 v13, 1, v13")
    A(f"v_add_u32 v12, v12, v13")
    A(f"v_and_b32 v13, 15, v12")
    for ks in range(8):
        A(f"v_add_u32 v14, {2*ks}, v5")
        A(f"v_xor_b32 v14, v14, v13")
        A(f"v_lshlrev_b32 v14, 4, v14")
        A(f"v_lshl_add_u32 v14, v12, 8, v14")
        A(f"v_add_u32 v{V_KA+ks}, s{S_T1}, v14")
    A(f"v_and_b32 v12, 15, v{L}")
    A(f"v_lshlrev_b32 v13, 2, v7")
    A(f"s_cmp_eq_u32 s{S_RH}, 0")
    A(f"s_cselect_b64 vcc, -1, 0")
    for i in range(4):
        A(f"v_add_u32 v14, {4*i}, v7")
        A(f"v_cndmask_b32 v14, v13, v14, vcc")
        A(f"v_xor_b32 v14, v14, v12")
        A(f"v_lshlrev_b32 v14, 4, v14")
        A(f"v_lshl_add_u32 v{V_DO+i}, v7, 8, v14")
    A(f"v_lshlrev_b32 v{V_ST}, 4, v{L}")
    A(f"s_lshl_b32 s{S_T0}, s{S_RH}, 15")
    A(f"s_add_u32 s{S_T1}, s{S_T1}, s{S_T0}")
    A(f"s_mul_i32 s{S_T0}, s{S_RH}, 3")
    for j in range(4):
        A(f"s_add_u32 s{S_G2}, s{S_T0}, {j}")
        A(f"s_and_b32 s{S_G2}, s{S_G2}, 3")
        A(f"s_lshl_b32 s{S_G2}, s{S_G2}, 13")
        A(f"s_add_u32 s{S_SLOT+j}, s{S_T1}, s{S_G2}")
    A(f"s_cmp_eq_u32 s{S_RH}, 0")
    A(f"s_cselect_b32 s{S_GOFF}, 0, 262144")
    A(f"s_cselect_b32 s{S_GNEXT}, 8192, 0")
    sc = math.log2(math.e) / math.sqrt(128.0)
    import struct
    scb = struct.unpack("<I", struct.pack("<f", sc))[0]
    A(f"s_mov_b32 s{S_SCALE}, 0x{scb:08x}"); A(f"s_mov_b32 s{S_SCALE+1}, 0x{scb:08x}")
    A(f"s_mov_b32 s{S_THR}, 0x47800000")

    def qwrite(c):
        base = A_LD + (c % QD) * 28
        r = []
        for i in range(3): r.append(f"ds_write_b128 v{V_WX}, {ar(base+4*i,4)} offset:{i*1024}")
        for i in range(4): r.append(f"ds_write_b128 v{V_WW+(i%2)}, {ar(base+12+4*i,4)} offset:{i*1024}")
        return r
    def FA(c, ks, db): return A_FR + (c % 2) * 56 + (ks * 4 + db) * 4
    def FB(c, ks, rb): return A_FR + (c % 2) * 56 + 32 + (ks * 3 + rb) * 4
    def qread(c):
        r = []
        for ks in range(2):
            for rb in range(3):
                r.append(f"ds_read_b128 {ar(FB(c,ks,rb),4)}, v{V_RX+ks} offset:{rb*2048}")
            for db in range(4):
                for e2 in range(2):
                    r.append(f"ds_read_b64_tr_b16 {ar(FA(c,ks,db)+2*e2,2)}, v{V_RW+db} offset:{ks*8192+e2*2048}")
        return r
    def qmfma(c):
        r = []
        for ks in range(2):
            for rb in range(3):
                for db in range(4):
                    acc = vr((rb * 4 + db) * 16, 16)
                    r.append(mfma(acc, ar(FA(c, ks, db), 4), ar(FB(c, ks, rb), 4), "0" if (c == 0 and ks == 0) else acc))
        return r
    kvq = []
    for j in range(4): kvq += dma_batch(j)
    def kv_take(nvm):
        out = []
        while kvq and (nvm > 0 or kvq[0][0] == "s"):
            x = kvq.pop(0); out.append(x)
            if x[0] == "vm": nvm -= 1
        return out
    def emit_kv(nvm):
        for ty, s_ in kv_take(nvm):
            if ty == "vm": A.vmem(s_, "kv")
            else: A(s_)
    A.wait_vm("q0")
    stamp(A, 1)
    for s_ in qwrite(0): A(s_)
    for s_, t_ in qload(QD): A.vmem(s_, t_)
    for s_ in qload_adv(): A(s_)
    emit_kv(2)
    A("s_waitcnt lgkmcnt(0)"); A("s_barrier")
    for s_ in qread(0): A(s_)
    A("s_waitcnt lgkmcnt(0)")
    for c in range(16):
        mf = qmfma(c)
        if c < 15:
            qs = ("qs" in sys.argv and c == 8)
            def qst(i):
                if qs: A(f"s_memtime s[{84+2*i}:{85+2*i}]")
            qst(0)
            A("s_barrier")
            qst(1)
            A.wait_vm(f"q{c+1}")
            qst(2)
            w = qwrite(c + 1)
            ld = qload(c + 1 + QD) if c + 1 + QD < 16 else []
            seq = [("s", x) for x in w] + [("vmq", x) for x in ld] + ([("s", x) for x in qload_adv()] if ld else []) + [("kv", None)] * 2
            per = (len(seq) + 9) // 10
            for g in range(10):
                A(mf[g])
                for ty, x in seq[g * per:(g + 1) * per]:
                    if ty == "s": A(x)
                    elif ty == "vmq": A.vmem(x[0], x[1])
                    else: emit_kv(1)
            qst(3)
            A("s_waitcnt lgkmcnt(0)"); A("s_barrier")
            qst(4)
            rd = qread(c + 1)
            for g in range(10, 24):
                A(mf[g])
                for x in rd[(g - 10) * 2:(g - 10) * 2 + 2]: A(x)
            A("s_waitcnt lgkmcnt(0)")
            qst(5)
        else:
            for g in range(24): A(mf[g])
    emit_kv(64)
    assert not kvq
    stamp(A, 2)
    nb = [i for i, t in enumerate(A.vm) if t == "kv"]
    n_after = len(A.vm) - 1 - nb[7]
    A(f"s_waitcnt vmcnt({min(n_after, 63)})")
    A("s_barrier")
    for ks in range(8): A(f"ds_read_b128 {ar(Kf(ks),4)}, v{V_KA+ks} offset:0")
    A("s_nop 7")
    for s_ in range(0, 192, 2):
        A(f"v_pk_mul_f32 v[{s_}:{s_+1}], v[{s_}:{s_+1}], s[{S_SCALE}:{S_SCALE+1}]")
        if s_ >= 2: A(f"v_cvt_pk_bf16_f32 v{(s_-2)//2}, v{s_-2}, v{s_-1}")
    A("v_cvt_pk_bf16_f32 v95, v190, v191")
    if dbg == "q":
        for rb in range(3):
            for ks in range(8):
                so = rb * 262144 + (ks // 4) * 4096
                A(f"s_mov_b32 s{S_T0}, {so}")
                A(f"buffer_store_dwordx4 {vr(Qreg(rb,ks),4)}, v{V_ST}, s[{S_WS}:{S_WS+3}], s{S_T0} offen offset:{(ks%4)*1024}")
        A("s_waitcnt vmcnt(0)")
        A("s_branch Lk1_end")
    A("s_waitcnt lgkmcnt(0)")

    stamp(A, 3)
    if TS: A("s_waitcnt lgkmcnt(0)")
    tramp = Tramp()
    carry = None
    for t in range(4):
        M, pre, val, carry = tile_iter(A, t, t == 0, t == 1, tramp, carry)
        emit_gaps(A, M, pre, val)
    A(f"s_mov_b32 s{S_CNT}, 7")
    A.label("Lloop")
    for t in range(4):
        M, pre, val, carry = tile_iter(A, t, False, False, tramp, carry)
        if t == 2 and "gs" in sys.argv:
            gl = [int(x) for x in sys.argv[sys.argv.index("gs")+1].split(",")]
            for i, g in enumerate(gl): pre[g].insert(0, f"s_memtime s[{84+2*i}:{85+2*i}]")
        if t == 3:
            pre[46] += [f"s_sub_u32 s{S_CNT}, s{S_CNT}, 1", f"s_cmp_lg_u32 s{S_CNT}, 0"]
        emit_gaps(A, M, pre, val)
    A("s_cbranch_scc1 Lloop")
    M, pre, val, _ = tile_iter(A, 0, False, False, tramp, carry)
    for g in range(8):
        for x in val[g]: A(x)
        if g == 7:
            A("s_nop 1")
            for x in pre[g]:
                if x.endswith(":"): A.label(x[:-1])
                elif x.startswith("s_waitcnt") or x.startswith("s_barrier"): pass
                else: A(x)
    tramp.items = tramp.items[:-2]
    A("s_nop 1")
    for g in range(8, 16): A(M[g])
    stamp(A, 4)
    for rb in range(3):
        A(f"v_mov_b32 v{V_T+rb}, v{V_L+rb}")
    A("s_nop 1")
    for rb in range(3):
        A(f"v_permlane32_swap_b32 v{V_L+rb}, v{V_T+rb}")
    A("s_nop 1")
    for rb in range(3):
        A(f"v_add_f32 v{V_L+rb}, v{V_L+rb}, v{V_T+rb}")
    for rb in range(3):
        A(f"v_rcp_f32 v{V_L+rb}, v{V_L+rb}")
    A("s_nop 7")
    tmp = V_S
    for rb in range(3):
        for db in range(4):
            b0 = tmp + ((rb * 4 + db) % 4) * 24
            o = Oreg(rb, db)
            for i in range(16): A(f"v_accvgpr_read_b32 v{b0+i}, a{o+i}")
            for i in range(16): A(f"v_mul_f32 v{b0+i}, v{b0+i}, v{V_L+rb}")
            for i in range(8): A(f"v_cvt_pk_bf16_f32 v{b0+16+i}, v{b0+2*i}, v{b0+2*i+1}")
            if db % 2 == 0: A(f"s_mov_b32 s{S_T0}, {rb*262144 + (db//2)*4096}")
            for q in range(2):
                ks = 2 * db + q
                A(f"buffer_store_dwordx4 {vr(b0+16+4*q,4)}, v{V_ST}, s[{S_WS}:{S_WS+3}], s{S_T0} offen offset:{(ks%4)*1024}")
    if TS:
        A("s_waitcnt vmcnt(0)")
        stamp(A, 5)
        A("s_waitcnt lgkmcnt(0)")
        A(f"s_lshl_b32 s{S_T0}, s2, 2")
        A(f"s_add_u32 s{S_T0}, s{S_T0}, s{S_WAVE}")
        A(f"s_lshl_b32 s{S_T0}, s{S_T0}, 5")
        A(f"s_add_u32 s{S_T0}, s{S_T0}, {32<<20}")
        A(f"s_add_u32 s{S_WS}, s{S_P+16}, s{S_T0}")
        A(f"s_addc_u32 s{S_WS+1}, s{S_P+17}, 0")
        A(f"s_mov_b32 s{S_WS+2}, 32")
        A("v_mov_b32 v1, 0")
        for i in range(6):
            A(f"v_mov_b32 v2, s{84+2*i}")
            A(f"buffer_store_dword v2, v1, s[{S_WS}:{S_WS+3}], 0 offen offset:{4*i}")
    A.label("Lk1_end")
    A("s_endpgm")
    for n, rb in tramp.items:
        A.label(f"Ltr{n}")
        A(f"s_call_b64 s[{S_RET}:{S_RET+1}], Lslow{rb}")
        A(f"s_branch Lret{n}")
    for rb in range(3): slow_path(A, rb)

def desc(A, k, vgpr, accum, sgpr=100):
    A.raw(".p2align 6")
    A.raw(f".amdhsa_kernel {k}")
    A.raw(f"  .amdhsa_next_free_vgpr {vgpr}")
    A.raw(f"  .amdhsa_next_free_sgpr {sgpr}")
    A.raw(f"  .amdhsa_accum_offset {accum}")
    A.raw("  .amdhsa_group_segment_fixed_size 0")
    A.raw("  .amdhsa_kernarg_size 104")
    A.raw("  .amdhsa_user_sgpr_count 2")
    A.raw("  .amdhsa_user_sgpr_kernarg_segment_ptr 1")
    A.raw("  .amdhsa_system_sgpr_workgroup_id_x 1")
    A.raw(".end_amdhsa_kernel")

def main(out, dbg=None, only1=False):
    from gen2 import kernel2, K2_LDS, K2_VGPR, K2_ACC
    A = Asm()
    hdr = open("cdna_kernels/" + NAME + ".s.ref").read().split("\n")
    for l in hdr:
        if l.startswith(";") and "@launch" not in l and "Override" not in l and "grid=ceil" not in l: A.raw(l)
    A.raw("; @launch kernel=attn_kernel grid=(256,1,1) block=(256,1,1) lds=163840")
    if not only1:
        A.raw(f"; @launch kernel=oproj_kernel grid=(256,1,1) block=(256,1,1) lds={K2_LDS}")
    A.raw('.amdgcn_target "amdgcn-amd-amdhsa--gfx950"')
    A.raw(".text")
    kernel1(A, dbg)
    n1 = len(A.L)
    if not only1: kernel2(A)
    bad = hazard_check(A.L)
    print("hazards:", bad)
    A.raw('.section .rodata,"a"')
    desc(A, "attn_kernel", 512, 256)
    if not only1: desc(A, "oproj_kernel", K2_VGPR, K2_ACC)
    open(out, "w").write(A.text())

if __name__ == "__main__":
    out = sys.argv[1]
    dbg = sys.argv[2] if len(sys.argv) > 2 and sys.argv[2] != "-" else None
    only1 = len(sys.argv) > 3 and sys.argv[3] == "only1"
    TS = 1 if "ts" in sys.argv else (2 if "rt" in sys.argv else 0)
    main(out, dbg, only1)
```
